```python
import torch

def _softmax(x, axis=-1):
    return torch.softmax(x, dim=axis)
def _gelu(x):
    return torch.nn.functional.gelu(x, approximate="tanh")
def _silu(x):
    return torch.nn.functional.silu(x)
def _sigmoid(x):
    return torch.sigmoid(x)
def _layernorm(x, axis=-1, eps=1e-5):
    m = x.mean(dim=axis, keepdim=True)
    v = x.var(dim=axis, keepdim=True, unbiased=False)
    return (x - m) / torch.sqrt(v + eps)
def _scatter_add(tgt, idx, src, axis=0):
    return tgt.clone().index_add_(axis, idx, src)
def _segment_sum(src, seg, n):
    out = torch.zeros((n,) + src.shape[1:], dtype=src.dtype)
    return out.index_add_(0, seg, src)
def _pad(x, pw):
    flat = tuple(v for pair in reversed(pw) for v in pair)
    return torch.nn.functional.pad(x, flat)

kernel_name = 'parallel_sum__mha_block_cached__glu_gated_swiglu__decode'

def setup_inputs():

    _w = (lambda a: (lambda t: t.to(torch.bfloat16) if t.is_floating_point() else t)(torch.as_tensor(a)))
    def _A_setup():
        B, Sq, D = 2, 1, 512
        H, Sk, Dh = 32, 16384, 128
        return {
            "x": _w((lambda *s: torch.randn(*s, dtype=torch.bfloat16) * 0.05)(B, Sq, D)),
            "k_cache": _w((lambda *s: torch.randn(*s, dtype=torch.bfloat16) * 1.6)(B, H, Sk, Dh)),
            "v_cache": _w((lambda *s: torch.randn(*s, dtype=torch.bfloat16) * 0.8)(B, H, Sk, Dh)),
            "wq": _w((lambda *s: torch.randn(*s, dtype=torch.bfloat16) * 1.6)(D, H * Dh) * (D ** -0.5)),
            "wo": _w((lambda *s: torch.randn(*s, dtype=torch.bfloat16) * 0.8)(H * Dh, D) * ((H * Dh) ** -0.5)),
        }
    _A_in = _A_setup()

    def _B_setup():
        B, S, D, F = 2, 1, 512, 1792
        return {
            "x": _w((lambda *s: torch.randn(*s, dtype=torch.bfloat16) * 0.05)(B, S, D)),
            "w1": _w((lambda *s: torch.randn(*s, dtype=torch.bfloat16) * 0.4)(D, F) * (2.0 / D) ** 0.5),
            "w3": _w((lambda *s: torch.randn(*s, dtype=torch.bfloat16) * 0.4)(D, F) * (2.0 / D) ** 0.5),
            "w2": _w((lambda *s: torch.randn(*s, dtype=torch.bfloat16) * 0.4)(F, D) * (2.0 / F) ** 0.5),
        }
    _B_in = _B_setup()

    return {
        "A_x": _A_in["x"],
        "A_k_cache": _A_in["k_cache"],
        "A_v_cache": _A_in["v_cache"],
        "A_wq": _A_in["wq"],
        "A_wo": _A_in["wo"],
        "B_x": _B_in["x"],
        "B_w1": _B_in["w1"],
        "B_w3": _B_in["w3"],
        "B_w2": _B_in["w2"],
    }

def reference(A_x, A_k_cache, A_v_cache, A_wq, A_wo, B_x, B_w1, B_w3, B_w2):
    def _A_ref(x, k_cache, v_cache, wq, wo):
        B, Sq, D = x.shape
        H, Dh = 32, 128
        q = (lambda x, *d: x.permute(*d))((x @ wq).reshape(B, Sq, H, Dh), 0, 2, 1, 3)
        scores = torch.einsum("bhqd,bhkd->bhqk", q, k_cache) * (Dh ** -0.5)
        p = _softmax(scores, axis=-1)
        o = torch.einsum("bhqk,bhkd->bhqd", p, v_cache)
        return (lambda x, *d: x.permute(*d))(o, 0, 2, 1, 3).reshape(B, Sq, H * Dh) @ wo

    def _B_ref(x, w1, w3, w2):
        gate = torch.einsum("bsd,df->bsf", x, w1)
        up = torch.einsum("bsd,df->bsf", x, w3)
        h = _silu(gate) * up
        out = torch.einsum("bsf,fd->bsd", h, w2)
        return out

    x = A_x
    xn = _layernorm(x, axis=-1)
    return x + _A_ref(xn, A_k_cache, A_v_cache, A_wq, A_wo) + _B_ref(xn, B_w1, B_w3, B_w2)
```

```python
import sys, argparse, struct

KN = "parallel_sum__mha_block_cached__glu_gated_swiglu__decode"
def f32bits(x): return struct.unpack("<I", struct.pack("<f", x))[0]

WS_Q   = 0x00000
WS_G   = 0x08000
WS_CTR = 0x10000
WS_P   = 0x20000
WS_Y   = 0x300000
WS_ST  = 0x400000
TAG    = 0x5bd1e995

LDS_XN = 0
LDS_QP = 4096
LDS_Q2 = LDS_QP + 8192
LDS_HF = LDS_Q2 + 512
LDS_PW = LDS_HF + 512
LDS_ML = LDS_PW + 4096
LDS_O2 = LDS_ML + 64
LDS_YP = LDS_O2 + 2048
LDS_FLAG = LDS_YP + 2048
LDS_SIZE = LDS_FLAG + 64

class Gen:
    def __init__(self): self.L = []
    def e(self, s): self.L.append("  " + s)
    def label(self, s): self.L.append(s + ":")

def gen(U=8, S1=16, stamp=False, mimic=True, spin_limit=1 << 17, prio=True, prog=5, nearx=64,
        sl_all=64, sl_p0=32, sl_p1=1, early_k=0, delay_k=None, xp=''):
    g = Gen(); e = g.e
    SCOPE = "sc0 sc1"
    gnt = "" if 'g' in xp else " nt"
    tile_keys = 4 * U
    NT = 16384 // tile_keys
    WQ = 16
    tb = tile_keys * 256
    N1 = S1 * WQ
    assert S1 >= prog + 2 and N1 + 2 * WQ <= NT
    LOG2E = 1.4426950408889634
    SCALE = 128 ** -0.5

    sX, sK, sV, sWQ, sWO, sW1, sW3, sW2, sOUT, sDBG, sWS = 4, 6, 8, 10, 12, 16, 18, 20, 22, 24, 26
    sSRDK, sSRDV = 28, 32
    sWAVE, sH, sS8, sPH = 36, 37, 38, 39
    sT0, sT1, sT2, sT3 = 40, 41, 42, 43
    sBASE, sCUR, sO0, sO1, sNXT, sCNT, sC2, sSC = 44, 45, 46, 47, 48, 49, 50, 51
    sHA, sSA, sPASS = 52, 53, 54
    sBASE2 = 55
    sEX = 56; sST = 58; sTM = 60; sSPIN = 62; sB = 63; sMASK = 64
    sOFF2 = 65; sT4 = 66; sT5 = 67; sPA = 68; sTC = 69
    sGB = 70
    sGS = 72
    sGC = 73
    sFF = 74
    NSG = 80

    def _stamp(idx_expr):
        e(f"s_memrealtime s[{sTM}:{sTM+1}]")
        e("s_waitcnt lgkmcnt(0)")
        e(f"s_sub_u32 s{sTM}, s{sTM}, s{sST}")
    def stampit(idx):
        if not stamp: return
        _stamp(0); e(f"v_writelane_b32 v7, s{sTM}, {idx}")
    def stamp_dyn(base):
        if not stamp: return
        _stamp(0); e(f"s_add_u32 m0, s{sPH}, {base}"); e("s_nop 1"); e(f"v_writelane_b32 v7, s{sTM}, m0")
    def stamp_tile():
        if not stamp: return
        _stamp(0); e(f"s_min_u32 m0, s{sTC}, 62"); e("s_nop 1"); e(f"v_writelane_b32 v7, s{sTM}, m0"); e(f"s_add_u32 s{sTC}, s{sTC}, 1")
    def stamp_flush():
        if not stamp: return
        e(f"s_lshl_b32 s{sT0}, s2, 3")
        e(f"s_add_u32 s{sT0}, s{sT0}, s{sWAVE}")
        e(f"s_lshl_b32 s{sT0}, s{sT0}, 8")
        e(f"s_add_u32 s{sT0}, s{sT0}, 0x{WS_ST:x}")
        e(f"v_writelane_b32 v7, s{sST}, 63")
        e("v_lshlrev_b32 v6, 2, v3")
        e(f"v_add_u32 v6, s{sT0}, v6")
        e(f"global_store_dword v6, v7, s[{sWS}:{sWS+1}]")
    def spin(label, body, done_cond, sleep):
        e(f"s_mov_b32 s{sSPIN}, {spin_limit}")
        g.label(label)
        body()
        e(f"s_sub_u32 s{sSPIN}, s{sSPIN}, 1")
        e(f"s_cmp_eq_u32 s{sSPIN}, 0")
        e(f"s_cbranch_scc1 {label}_done")
        done_cond(label + "_done")
        if sleep: e(f"s_sleep {sleep}")
        e(f"s_branch {label}")
        g.label(label + "_done")
    def lds_wait(label, off, ge, va, vb_, sleep):
        e(f"v_mov_b32 v{va}, {LDS_FLAG+off}")
        def b_():
            e(f"ds_read_b32 v{vb_}, v{va}")
            e("s_waitcnt lgkmcnt(0)")
            e(f"v_readfirstlane_b32 s{sT1}, v{vb_}")
        def d_(lab):
            e(f"s_cmp_ge_u32 s{sT1}, {ge}")
            e(f"s_cbranch_scc1 {lab}")
        spin(label, b_, d_, sleep)
    def lds_add(off, va, vb_):
        e(f"v_mov_b32 v{va}, {LDS_FLAG+off}")
        e(f"v_mov_b32 v{vb_}, 1")
        e("s_mov_b64 exec, 1")
        e(f"ds_add_u32 v{va}, v{vb_}")
        e("s_mov_b64 exec, -1")
    def rbf(dst, src):
        e(f"v_cvt_pk_bf16_f32 v{dst}, v{src}, v{src}")
        e(f"v_and_b32 v{dst}, s{sMASK}, v{dst}")
    def wave_allreduce(regs, tmps, op="v_add_f32"):
        for ctrl in ["quad_perm:[1,0,3,2]", "quad_perm:[2,3,0,1]", "row_half_mirror", "row_mirror"]:
            e("s_nop 1")
            for r in regs: e(f"{op}_dpp v{r}, v{r}, v{r} {ctrl} row_mask:0xf bank_mask:0xf")
        for sw in ["v_permlane16_swap_b32", "v_permlane32_swap_b32"]:
            for r, t in zip(regs, tmps): e(f"v_mov_b32 v{t}, v{r}")
            e("s_nop 1")
            for r, t in zip(regs, tmps): e(f"{sw} v{r}, v{t}")
            e("s_nop 1")
            for r, t in zip(regs, tmps): e(f"{op} v{r}, v{r}, v{t}")

    e("s_cmp_ge_u32 s2, 256")
    e("s_cbranch_scc1 L_done")
    if stamp: e(f"s_memrealtime s[{sST}:{sST+1}]")
    e("s_load_dwordx16 s[4:19], s[0:1], 0")
    e("s_load_dwordx8 s[20:27], s[0:1], 64")
    e("v_lshrrev_b32 v2, 6, v0")
    e("v_and_b32 v3, 63, v0                  ; lane")
    e(f"v_readfirstlane_b32 s{sWAVE}, v2")
    e(f"s_lshr_b32 s{sH}, s2, 3               ; r = hB")
    e(f"s_and_b32 s{sS8}, s2, 7               ; x = slotB")
    e(f"s_lshl_b32 s{sHA}, s{sS8}, 2")
    e(f"s_and_b32 s{sT0}, s{sH}, 3")
    e(f"s_add_u32 s{sHA}, s{sHA}, s{sT0}         ; hA = 4x + (r&3)")
    e(f"s_lshr_b32 s{sSA}, s{sH}, 2             ; slotA = r>>2")
    e(f"s_mov_b32 s{sC2}, 0x{f32bits(LOG2E):08x}")
    e(f"s_mov_b32 s{sSC}, 0x{f32bits(SCALE):08x}")
    e(f"s_mov_b32 s{sMASK}, 0xffff0000")
    e(f"s_mov_b32 s{sPH}, 0")
    if stamp: e("v_mov_b32 v7, 0")
    e("v_and_b32 v4, 15, v3                  ; i16")
    e("v_lshrrev_b32 v5, 4, v3               ; g")
    e("v_lshlrev_b32 v6, 4, v3               ; lane*16")
    e(f"s_cmp_ge_u32 s{sWAVE}, 4")
    e("s_cbranch_scc1 L_helper")

    vOff = 6
    vA_K = 8; vA_V = vA_K + 4 * U
    vQ = vA_V + 4 * U; vAcc = vQ + 4; vM = vAcc + 8; vL = vM + 1
    vS = vL + 1; vP = vS + U; vPh = vP + U; vT = vPh + U
    vAt = vT + 4; vCt = vAt + 1
    vAd = vCt + 1
    vQT = vP
    nv_stream = vAd + 1
    vX = vA_V; vF = vA_V + 8; vTT = vA_V + 24

    e(f"s_and_b32 s{sB}, s{sWAVE}, 1            ; batch")
    e(f"s_lshr_b32 s{sT0}, s{sWAVE}, 1")
    e(f"s_lshl_b32 s{sT1}, s{sSA}, 1")
    e(f"s_add_u32 s{sCUR}, s{sT0}, s{sT1}")
    e(f"s_lshl_b32 s{sT1}, s{sS8}, 1")
    e(f"s_add_u32 s{sT0}, s{sT0}, s{sT1}         ; wqB")
    e(f"s_add_u32 s{sT5}, s{sT0}, {N1}")
    e(f"s_lshl_b32 s{sT1}, s{sB}, 5")
    e(f"s_add_u32 s{sT2}, s{sT1}, s{sHA}")
    e(f"s_lshl_b32 s{sBASE}, s{sT2}, 22")
    e(f"s_add_u32 s{sT2}, s{sT1}, s{sH}          ; bhB")
    e(f"s_lshl_b32 s{sBASE2}, s{sT2}, 22")
    e(f"s_lshl_b32 s{sT2}, s{sT2}, 8")
    e(f"s_add_u32 s{sT2}, s{sT2}, 0x{WS_CTR:x}")
    e(f"v_mov_b32 v{vCt}, s{sT2}")
    e(f"s_mul_i32 s{sOFF2}, s{sT5}, {tb}")
    e(f"s_add_u32 s{sOFF2}, s{sOFF2}, s{sBASE2}")
    e(f"s_mul_i32 s{sO0}, s{sCUR}, {tb}")
    e(f"s_add_u32 s{sO0}, s{sO0}, s{sBASE}")
    e(f"s_add_u32 s{sO1}, s{sO0}, 4096")
    e("s_waitcnt lgkmcnt(0)")
    e(f"s_cmp_lg_u32 s{sWAVE}, 0")
    e("s_cbranch_scc1 L_noln")
    e(f"global_load_dwordx4 v[{vX}:{vX+3}], v6, s[{sX}:{sX+1}]")
    e(f"global_load_dwordx4 v[{vX+4}:{vX+7}], v6, s[{sX}:{sX+1}] offset:1024")
    g.label("L_noln")
    e(f"s_mov_b32 s{sSRDK}, s{sK}"); e(f"s_mov_b32 s{sSRDK+1}, s{sK+1}"); e(f"s_mov_b32 s{sSRDK+2}, 0x10000000"); e(f"s_mov_b32 s{sSRDK+3}, 0x00020000")
    e(f"s_mov_b32 s{sSRDV}, s{sV}"); e(f"s_mov_b32 s{sSRDV+1}, s{sV+1}"); e(f"s_mov_b32 s{sSRDV+2}, 0x10000000"); e(f"s_mov_b32 s{sSRDV+3}, 0x00020000")
    def loads(reg, srd, j0=0, j1=None):
        for j in range(j0, U if j1 is None else j1):
            so = sO0 if j < 4 else sO1
            e(f"buffer_load_dwordx4 v[{reg+4*j}:{reg+4*j+3}], v{vOff}, s[{srd}:{srd+3}], s{so} offen offset:{(j%4)*1024} nt")
    if early_k: loads(vA_K, sSRDK, 0, early_k)
    e(f"s_cmp_lg_u32 s{sWAVE}, 0")
    e("s_cbranch_scc1 L_ln_done")
    e(f"s_waitcnt vmcnt({early_k})")
    stampit(3)
    for b in range(2):
        for d in range(4):
            e(f"v_lshlrev_b32 v{vF+8*b+2*d}, 16, v{vX+4*b+d}")
            e(f"v_and_b32 v{vF+8*b+2*d+1}, s{sMASK}, v{vX+4*b+d}")
    tt = vS
    for b in range(2):
        r = tt + b
        e(f"v_add_f32 v{r}, v{vF+8*b}, v{vF+8*b+1}")
        for k in range(2, 8): e(f"v_add_f32 v{r}, v{r}, v{vF+8*b+k}")
    wave_allreduce([tt, tt + 1], [tt + 2, tt + 3])
    for b in range(2): e(f"v_mul_f32 v{tt+b}, 0x{f32bits(1.0/512):08x}, v{tt+b}")
    for b in range(2):
        r = tt + 4 + b
        e(f"v_sub_f32 v{tt+6}, v{vF+8*b}, v{tt+b}")
        e(f"v_mul_f32 v{r}, v{tt+6}, v{tt+6}")
        for k in range(1, 8):
            e(f"v_sub_f32 v{tt+6}, v{vF+8*b+k}, v{tt+b}")
            e(f"v_fmac_f32 v{r}, v{tt+6}, v{tt+6}")
    wave_allreduce([tt + 4, tt + 5], [tt + 2, tt + 3])
    for b in range(2): e(f"v_mul_f32 v{tt+4+b}, 0x{f32bits(1.0/512):08x}, v{tt+4+b}")
    for b in range(2):
        rbf(tt + b, tt + b)
        rbf(tt + 4 + b, tt + 4 + b)
        e(f"v_add_f32 v{tt+4+b}, 0x{f32bits(1e-5):08x}, v{tt+4+b}")
        rbf(tt + 4 + b, tt + 4 + b)
        e(f"v_sqrt_f32 v{tt+4+b}, v{tt+4+b}")
        e("s_nop 0")
        rbf(tt + 4 + b, tt + 4 + b)
        e(f"v_rcp_f32 v{tt+6+b}, v{tt+4+b}")
    e("s_nop 0")
    for k in range(8):
        for b in range(2):
            x = vF + 8 * b + k
            y = vX + (k & 1) * 2 + b + 4 * 0 if False else None
            e(f"v_sub_f32 v{x}, v{x}, v{tt+b}")
            rbf(x, x)
            e(f"v_mul_f32 v{tt+8+b}, v{x}, v{tt+6+b}")
            e(f"v_fma_f32 v{tt+10+b}, -v{tt+8+b}, v{tt+4+b}, v{x}")
            e(f"v_fma_f32 v{x}, v{tt+10+b}, v{tt+6+b}, v{tt+8+b}")
            dst = vX + (k % 4) * 2 + b
            e(f"v_cvt_pk_bf16_f32 v{dst}, v{x}, v{x}")
        if k % 4 == 3:
            e(f"v_lshlrev_b32 v{tt+12}, 6, v3           ; lane*64")
            e(f"ds_write_b128 v{tt+12}, v[{vX}:{vX+3}] offset:{LDS_XN+32*(k//4)}")
            e(f"ds_write_b128 v{tt+12}, v[{vX+4}:{vX+7}] offset:{LDS_XN+32*(k//4)+16}")
            e("s_nop 1")
    e("s_waitcnt lgkmcnt(0)")
    stampit(4)
    g.label("L_ln_done")
    e("s_barrier")
    loads(vA_K, sSRDK, early_k)
    loads(vA_V, sSRDV)
    for i in range(8): e(f"v_mov_b32 v{vAcc+i}, 0")
    e(f"v_mov_b32 v{vM}, 0xff800000")
    e(f"v_mov_b32 v{vL}, 0")
    e(f"v_lshlrev_b32 v{vAd}, 5, v4")
    e(f"s_lshl_b32 s{sT1}, s{sB}, 9")
    e(f"v_add_u32 v{vAd}, s{sT1}, v{vAd}")
    e("s_barrier")
    stampit(0)
    for half in range(2):
        for w in range(2):
            e(f"ds_read_b128 v[{vQT+8*w}:{vQT+8*w+3}], v{vAd} offset:{LDS_QP+1024*(2*half+w)}")
            e(f"ds_read_b128 v[{vQT+8*w+4}:{vQT+8*w+7}], v{vAd} offset:{LDS_QP+1024*(2*half+w)+16}")
        e("s_waitcnt lgkmcnt(0)")
        for c in range(8):
            if half == 0: e(f"v_add_f32 v{vS+c}, v{vQT+c}, v{vQT+8+c}")
            else: e(f"v_add_f32 v{vQT+c}, v{vQT+c}, v{vQT+8+c}")
        if half == 1:
            for c in range(8): e(f"v_add_f32 v{vS+c}, v{vS+c}, v{vQT+c}")
    for d in range(4): e(f"v_cvt_pk_bf16_f32 v{vQ+d}, v{vS+2*d}, v{vS+2*d+1}")

    def qk(kb):
        for d in range(4):
            for j in range(U):
                src2 = "0" if d == 0 else f"v{vS+j}"
                e(f"v_dot2_f32_bf16 v{vS+j}, v{kb+4*j+d}, v{vQ+d}, {src2}")
    def softmax():
        for ctrl in ["quad_perm:[1,0,3,2]", "quad_perm:[2,3,0,1]", "row_half_mirror", "row_mirror"]:
            for j in range(U):
                e(f"v_add_f32_dpp v{vS+j}, v{vS+j}, v{vS+j} {ctrl} row_mask:0xf bank_mask:0xf")
        t0, t1, t2 = vT, vT + 1, vT + 2
        if mimic:
            for j in range(0, U, 2):
                e(f"v_cvt_pk_bf16_f32 v{vP+j}, v{vS+j}, v{vS+j+1}")
            for j in range(0, U, 2):
                e(f"v_lshlrev_b32 v{vS+j}, 16, v{vP+j}")
                e(f"v_and_b32 v{vS+j+1}, s{sMASK}, v{vP+j}")
            for j in range(U):
                e(f"v_mul_f32 v{vS+j}, s{sSC}, v{vS+j}")
            for j in range(0, U, 2):
                e(f"v_cvt_pk_bf16_f32 v{vP+j}, v{vS+j}, v{vS+j+1}")
            for j in range(0, U, 2):
                e(f"v_lshlrev_b32 v{vS+j}, 16, v{vP+j}")
                e(f"v_and_b32 v{vS+j+1}, s{sMASK}, v{vP+j}")
        else:
            for j in range(U):
                e(f"v_mul_f32 v{vS+j}, s{sSC}, v{vS+j}")
        e(f"v_max3_f32 v{t0}, v{vS}, v{vS+1}, v{vM}")
        for j in range(2, U, 2):
            e(f"v_max3_f32 v{t0}, v{vS+j}, v{vS+j+1}, v{t0}")
        e(f"v_mul_f32 v{t1}, s{sC2}, v{t0}")
        e(f"v_fma_f32 v{t2}, v{vM}, s{sC2}, -v{t1}")
        e(f"v_mov_b32 v{vM}, v{t0}")
        for j in range(U):
            e(f"v_fma_f32 v{vS+j}, v{vS+j}, s{sC2}, -v{t1}")
        e(f"v_exp_f32 v{t2}, v{t2}")
        for j in range(U):
            e(f"v_exp_f32 v{vS+j}, v{vS+j}")
        e(f"v_mul_f32 v{vL}, v{vL}, v{t2}")
        for i in range(8):
            e(f"v_mul_f32 v{vAcc+i}, v{vAcc+i}, v{t2}")
        for j in range(U):
            e(f"v_cvt_pk_bf16_f32 v{vP+j}, v{vS+j}, 0")
        for j in range(U):
            e(f"v_add_f32 v{vL}, v{vL}, v{vS+j}")
        for j in range(U):
            e(f"v_lshlrev_b32 v{vPh+j}, 16, v{vP+j}")
    def pv(vb):
        for j in range(U):
            for d in range(4):
                e(f"v_dot2_f32_bf16 v{vAcc+2*d}, v{vb+4*j+d}, v{vP+j}, v{vAcc+2*d}")
                e(f"v_dot2_f32_bf16 v{vAcc+2*d+1}, v{vb+4*j+d}, v{vPh+j}, v{vAcc+2*d+1}")
    def atomic():
        e("s_mov_b64 exec, 1")
        e(f"v_mov_b32 v{vAt}, 1")
        e(f"global_atomic_add v{vAt}, v{vCt}, v{vAt}, s[{sWS}:{sWS+1}] sc0 sc1")
        e("s_mov_b64 exec, -1")

    e(f"s_mov_b32 s{sCNT}, {S1}")
    if stamp: e(f"s_mov_b32 s{sTC}, 8")
    g.label("L_sloop")
    e(f"s_waitcnt vmcnt({U})")
    stamp_tile()
    qk(vA_K)
    e(f"s_add_u32 s{sO0}, s{sO0}, {WQ*tb}")
    e(f"s_cmp_eq_u32 s{sCNT}, 1")
    e(f"s_cselect_b32 s{sO0}, s{sOFF2}, s{sO0}")
    e(f"s_add_u32 s{sO1}, s{sO0}, 4096")
    loads(vA_K, sSRDK)
    softmax()
    e(f"s_waitcnt vmcnt({U})")
    pv(vA_V)
    loads(vA_V, sSRDV)
    if delay_k is not None:
        e(f"s_cmp_lg_u32 s{sCNT}, {S1 - delay_k}")
        e("s_cbranch_scc1 L_nodel")
        lds_add(20, vAd, vT)
        g.label("L_nodel")
    e(f"s_cmp_lg_u32 s{sCNT}, {prog}")
    e("s_cbranch_scc1 L_noprog")
    lds_add(12, vAd, vT)
    g.label("L_noprog")
    e(f"s_sub_u32 s{sCNT}, s{sCNT}, 1")
    e(f"s_cmp_lg_u32 s{sCNT}, 0")
    e("s_cbranch_scc1 L_sloop")
    e("s_branch L_dump")
    g.label("L_phase2")
    for i in range(8): e(f"v_mov_b32 v{vAcc+i}, 0")
    e(f"v_mov_b32 v{vM}, 0xff800000")
    e(f"v_mov_b32 v{vL}, 0")
    lds_wait("L_pq2", 8, 1, vAd, vT, 4)
    e(f"v_lshlrev_b32 v{vAd}, 4, v4")
    e(f"s_lshl_b32 s{sT1}, s{sB}, 8")
    e(f"v_add_u32 v{vAd}, s{sT1}, v{vAd}")
    e(f"ds_read_b128 v[{vQ}:{vQ+3}], v{vAd} offset:{LDS_Q2}")
    base = N1 + 2 * WQ
    e(f"s_add_u32 s{sNXT}, s{sT5}, {WQ}")
    e(f"s_sub_u32 s{sNXT}, s{sNXT}, {base}")
    e(f"v_mov_b32 v{vAt}, s{sNXT}")
    e(f"s_mov_b32 s{sCNT}, 0")
    e("s_waitcnt lgkmcnt(0)")
    g.label("L_dloop")
    e(f"s_waitcnt vmcnt({U})")
    stamp_tile()
    qk(vA_K)
    e(f"v_readfirstlane_b32 s{sNXT}, v{vAt}")
    e("s_nop 3")
    e(f"s_add_u32 s{sNXT}, s{sNXT}, {base}")
    e(f"s_cmp_lt_u32 s{sNXT}, {NT-nearx}")
    e("s_cbranch_scc1 L_notnear")
    e(f"s_cmp_lg_u32 s{sCNT}, 0")
    e("s_cbranch_scc1 L_notnear2")
    e(f"s_mov_b32 s{sCNT}, 1")
    lds_add(16, vAd, vT)
    g.label("L_notnear2")
    e(f"s_cmp_ge_u32 s{sNXT}, {NT}")
    e("s_cbranch_scc1 L_last")
    g.label("L_notnear")
    e(f"s_mul_i32 s{sO0}, s{sNXT}, {tb}")
    e(f"s_add_u32 s{sO0}, s{sO0}, s{sBASE2}")
    e(f"s_add_u32 s{sO1}, s{sO0}, 4096")
    loads(vA_K, sSRDK)
    atomic()
    softmax()
    e(f"s_waitcnt vmcnt({U+1})")
    pv(vA_V)
    loads(vA_V, sSRDV)
    e("s_branch L_dloop")
    g.label("L_last")
    softmax()
    e("s_waitcnt vmcnt(0)")
    pv(vA_V)
    g.label("L_dump")
    stamp_dyn(1)
    t0, t1, t2 = vT, vT + 1, vT + 2
    e("s_nop 3")
    e(f"v_mov_b32 v{t0}, v{vM}")
    e(f"v_mov_b32 v{t1}, v{vM}")
    e("s_nop 1")
    e(f"v_permlane16_swap_b32 v{t0}, v{t1}")
    e("s_nop 1")
    e(f"v_max_f32 v{t0}, v{t0}, v{t1}")
    e(f"v_mov_b32 v{t1}, v{t0}")
    e("s_nop 1")
    e(f"v_permlane32_swap_b32 v{t0}, v{t1}")
    e("s_nop 1")
    e(f"v_max_f32 v{t0}, v{t0}, v{t1}")
    e(f"v_sub_f32 v{t1}, v{vM}, v{t0}")
    e(f"v_mul_f32 v{t1}, s{sC2}, v{t1}")
    e(f"v_exp_f32 v{t1}, v{t1}")
    e("s_nop 1")
    for i in range(8): e(f"v_mul_f32 v{vAcc+i}, v{vAcc+i}, v{t1}")
    e(f"v_mul_f32 v{vL}, v{vL}, v{t1}")
    e(f"v_mov_b32 v{vM}, v{t0}")
    e("s_nop 1")
    for j in range(4): e(f"v_permlane32_swap_b32 v{vAcc+j}, v{vAcc+j+4}")
    e(f"v_mov_b32 v{t1}, v{vL}")
    e("s_nop 1")
    e(f"v_permlane32_swap_b32 v{vL}, v{t1}")
    for j in range(4): e(f"v_add_f32 v{vAcc+j}, v{vAcc+j}, v{vAcc+j+4}")
    e(f"v_add_f32 v{vL}, v{vL}, v{t1}")
    e("s_nop 1")
    for j in range(2): e(f"v_permlane16_swap_b32 v{vAcc+j}, v{vAcc+j+2}")
    e(f"v_mov_b32 v{t1}, v{vL}")
    e("s_nop 1")
    e(f"v_permlane16_swap_b32 v{vL}, v{t1}")
    for j in range(2): e(f"v_add_f32 v{vAcc+j}, v{vAcc+j}, v{vAcc+j+2}")
    e(f"v_add_f32 v{vL}, v{vL}, v{t1}")
    e(f"v_lshlrev_b32 v{vAd}, 5, v4                ; i*32")
    e(f"v_lshl_add_u32 v{vAd}, v5, 3, v{vAd}           ; + g*8")
    e(f"s_lshl_b32 s{sT0}, s{sWAVE}, 9")
    e(f"s_lshl_b32 s{sT1}, s{sPH}, 11")
    e(f"s_add_u32 s{sT0}, s{sT0}, s{sT1}")
    e(f"v_add_u32 v{vAd}, s{sT0}, v{vAd}")
    e(f"ds_write_b64 v{vAd}, v[{vAcc}:{vAcc+1}] offset:{LDS_PW}")
    e(f"s_lshl_b32 s{sT0}, s{sWAVE}, 3")
    e(f"s_lshl_b32 s{sT1}, s{sPH}, 5")
    e(f"s_add_u32 s{sT0}, s{sT0}, s{sT1}")
    e(f"v_mov_b32 v{vAd}, s{sT0}")
    e(f"ds_write_b64 v{vAd}, v[{vM}:{vM+1}] offset:{LDS_ML}")
    e("s_waitcnt lgkmcnt(0)")
    lds_add(0, vAd, t1)
    e(f"s_cmp_eq_u32 s{sPH}, 0")
    e(f"s_mov_b32 s{sPH}, 1")
    e("s_cbranch_scc1 L_phase2")
    stamp_flush()
    e("s_endpgm")

    g.label("L_helper")
    sHW = sB
    vTid = 1
    if prio: e("s_setprio 3")
    e(f"s_sub_u32 s{sHW}, s{sWAVE}, 4")
    e(f"v_subrev_u32 v{vTid}, 256, v0")
    vTT = 32; vMK = 48; vBo = 52; vD = 60; vWq = 64
    vXS = 16
    vR = 64; vU8 = 80; vZ = 88; vWT = 192; vG = 96; vY = 116; vRun = 132
    e(f"v_and_b32 v8, 1, v4")
    e(f"v_mov_b32 v9, 0xffff")
    e(f"v_lshlrev_b32 v8, 4, v8")
    e(f"v_lshlrev_b32 v9, v8, v9")
    e(f"v_bfe_u32 v10, v4, 1, 2")
    for r in range(4):
        e(f"v_cmp_eq_u32 vcc, {r}, v10")
        e("s_nop 1")
        e(f"v_cndmask_b32 v{vMK+r}, 0, v9, vcc")
    e(f"v_mov_b32 v8, {LDS_FLAG}")
    for i in range(4): e(f"v_mov_b32 v{12+i}, 0")
    e(f"ds_write_b128 v8, v[12:15]")
    e(f"ds_write_b128 v8, v[12:15] offset:16")
    e(f"s_mov_b32 s{sPASS}, 0")
    e(f"s_and_b32 s{sT0}, s{sH}, 7")
    e(f"s_cmp_eq_u32 s{sT0}, s{sS8}")
    e(f"s_cselect_b32 s{sFF}, 1, 0")
    e(f"s_cmp_ge_u32 s{sH}, 28")
    e(f"s_cselect_b32 s{sFF}, 0, s{sFF}")
    if 'f' in xp: e(f"s_mov_b32 s{sFF}, 0")
    e(f"s_mov_b32 s{sGS}, 8192")
    e(f"s_lshl_b32 s{sGC}, s{sHA}, 8")
    e("s_waitcnt lgkmcnt(0)")
    e(f"s_mov_b32 s{sGB}, s{sWQ}")
    e(f"s_mov_b32 s{sGB+1}, s{sWQ+1}")
    e(f"s_lshl_b32 s{sT1}, s{sHW}, 10")
    e(f"v_lshlrev_b32 v2, 3, v5")
    e(f"v_lshrrev_b32 v8, 3, v4")
    e(f"v_lshl_add_u32 v2, v8, 2, v2")
    e(f"v_add_u32 v2, s{sT1}, v2")
    g.label("L_gemv")
    e(f"s_lshl_b32 s{sT0}, s{sHW}, 7")
    e(f"v_add_u32 v8, s{sT0}, v5")
    e(f"v_mul_lo_u32 v8, v8, s{sGS}")
    e(f"v_lshl_add_u32 v8, v4, 4, v8")
    e(f"v_add_u32 v8, s{sGC}, v8")
    e(f"s_lshl_b32 s{sT2}, s{sGS}, 2")
    for j in range(32):
        if j: e(f"v_add_u32 v8, s{sT2}, v8")
        e(f"global_load_dwordx4 v[{vWq+4*j}:{vWq+4*j+3}], v8, s[{sGB}:{sGB+1}]{gnt}")
    stampit(16)
    e(f"s_cmp_lg_u32 s{sPASS}, 0")
    e("s_cbranch_scc1 L_nob0")
    e("s_barrier                              ; #0")
    g.label("L_nob0")
    for j in range(32):
        e(f"ds_read_b32 v{vXS+j}, v2 offset:{LDS_XN+32*j}")
    for i in range(4): e(f"v_mov_b32 v{vD+i}, 0")
    e("s_waitcnt lgkmcnt(0)")
    stampit(17)
    for r in range(4):
        e(f"v_and_b32 v{vBo+r}, v{vXS}, v{vMK+r}")
    for j in range(32):
        bo = vBo + 4 * (j & 1)
        bn = vBo + 4 * ((j + 1) & 1)
        if j < 31:
            for r in range(4):
                e(f"v_and_b32 v{bn+r}, v{vXS+j+1}, v{vMK+r}")
        else:
            e("s_nop 1")
        e(f"s_waitcnt vmcnt({31-j})")
        e(f"v_mfma_f32_16x16x32_bf16 v[{vD}:{vD+3}], v[{vWq+4*j}:{vWq+4*j+3}], v[{bo}:{bo+3}], v[{vD}:{vD+3}]")
    stampit(19)
    e(f"v_lshrrev_b32 v8, 3, v4")
    e(f"v_lshlrev_b32 v8, 9, v8")
    e(f"v_lshl_add_u32 v8, v5, 7, v8")
    e(f"v_and_b32 v9, 7, v4")
    e(f"v_lshl_add_u32 v8, v9, 2, v8")
    e(f"s_lshl_b32 s{sT1}, s{sHW}, 10")
    e(f"s_lshl_b32 s{sT0}, s{sPASS}, 12")
    e(f"s_add_u32 s{sT1}, s{sT1}, s{sT0}")
    e(f"v_add_u32 v8, s{sT1}, v8")
    e("s_nop 7")
    for r in range(4):
        e(f"ds_write_b32 v8, v{vD+r} offset:{LDS_QP+32*r}")
    e("s_waitcnt lgkmcnt(0)")
    e(f"s_cmp_lg_u32 s{sPASS}, 0")
    e("s_cbranch_scc1 L_gemv_done")
    stampit(20)
    e("s_barrier                              ; #2")
    if delay_k is not None:
        lds_wait("L_pdel", 20, 1, 8, 9, 16)
    e(f"s_cmp_eq_u32 s{sFF}, 0")
    e("s_cbranch_scc1 L_gemv_done")
    e(f"s_mov_b32 s{sPASS}, 1")
    e(f"s_mov_b32 s{sGS}, 3584")
    e(f"s_cmp_ge_u32 s{sH}, 14")
    e(f"s_cselect_b32 s{sGB}, s{sW3}, s{sW1}")
    e(f"s_cselect_b32 s{sGB+1}, s{sW3+1}, s{sW1+1}")
    e(f"s_cselect_b32 s{sT0}, 14, 0")
    e(f"s_sub_u32 s{sT0}, s{sH}, s{sT0}")
    e(f"s_lshl_b32 s{sGC}, s{sT0}, 8")
    e("s_branch L_gemv")
    g.label("L_gemv_done")
    for i in range(4): e(f"v_mov_b32 v{vZ+i}, 0")
    e(f"s_cmp_eq_u32 s{sHW}, 1")
    e("s_cbranch_scc0 L_nclr1")
    e(f"s_lshl_b32 s{sT0}, s{sHA}, 3")
    e(f"s_add_u32 s{sT0}, s{sT0}, s{sSA}")
    e(f"s_lshl_b32 s{sT0}, s{sT0}, 12")
    e(f"s_add_u32 s{sT0}, s{sT0}, 0x{WS_P:x}")
    e(f"v_add_u32 v{vTT}, s{sT0}, v6")
    for o in (0, 1024, 2048):
        if 'c' not in xp: e(f"global_store_dwordx4 v{vTT}, v[{vZ}:{vZ+3}], s[{sWS}:{sWS+1}] offset:{o} {SCOPE}")
    e(f"s_lshl_b32 s{sT0}, s2, 12")
    e(f"s_add_u32 s{sT0}, s{sT0}, 0x{WS_P + 0x100000:x}")
    e(f"v_add_u32 v{vTT+1}, s{sT0}, v6")
    for o in (0, 1024, 2048):
        if 'c' not in xp: e(f"global_store_dwordx4 v{vTT+1}, v[{vZ}:{vZ+3}], s[{sWS}:{sWS+1}] offset:{o} {SCOPE}")
    g.label("L_nclr1")
    e(f"s_cmp_eq_u32 s{sHW}, 2")
    e("s_cbranch_scc0 L_nclr2")
    e(f"s_lshl_b32 s{sT0}, s{sS8}, 5")
    e(f"s_add_u32 s{sT0}, s{sT0}, s{sH}")
    e(f"s_lshl_b32 s{sT0}, s{sT0}, 10")
    e(f"s_add_u32 s{sT0}, s{sT0}, 0x{WS_Y:x}")
    e(f"v_add_u32 v{vTT}, s{sT0}, v6")
    if 'c' not in xp: e(f"global_store_dwordx4 v{vTT}, v[{vZ}:{vZ+3}], s[{sWS}:{sWS+1}] {SCOPE}")
    g.label("L_nclr2")
    e("s_waitcnt vmcnt(0)")
    lds_add(4, vTT + 4, vTT + 5)
    e(f"v_lshrrev_b32 v{vTT}, 3, v{vTid}          ; rg")
    e(f"v_and_b32 v{vTT+1}, 7, v{vTid}            ; cc")
    e(f"v_lshlrev_b32 v{vTT+2}, 10, v{vTT}")
    e(f"v_lshl_add_u32 v{vTT+2}, v{vTT+1}, 4, v{vTT+2}")
    e(f"s_lshl_b32 s{sT0}, s{sH}, 17")
    e(f"s_lshl_b32 s{sT1}, s{sS8}, 7")
    e(f"s_add_u32 s{sT0}, s{sT0}, s{sT1}")
    e(f"v_add_u32 v{vTT+3}, s{sT0}, v{vTT+2}")
    for k in range(4):
        if k: e(f"v_add_u32 v{vTT+3}, 0x8000, v{vTT+3}")
        if 'w' not in xp: e(f"global_load_dwordx4 v[{vWT+4*k}:{vWT+4*k+3}], v{vTT+3}, s[{sWO}:{sWO+1}] nt")
    e(f"s_mul_i32 s{sT0}, s{sH}, {56*1024}")
    e(f"s_add_u32 s{sT0}, s{sT0}, s{sT1}")
    e(f"v_add_u32 v{vTT+3}, s{sT0}, v{vTT+2}")
    if 'w' not in xp: e(f"global_load_dwordx4 v[{vWT+16}:{vWT+19}], v{vTT+3}, s[{sW2}:{sW2+1}] nt")
    e(f"v_min_u32 v{vTT+4}, 23, v{vTT}")
    e(f"v_lshlrev_b32 v{vTT+4}, 10, v{vTT+4}")
    e(f"v_lshl_add_u32 v{vTT+4}, v{vTT+1}, 4, v{vTT+4}")
    e(f"s_add_u32 s{sT0}, s{sT0}, 0x8000")
    e(f"v_add_u32 v{vTT+4}, s{sT0}, v{vTT+4}")
    if 'w' not in xp: e(f"global_load_dwordx4 v[{vWT+20}:{vWT+23}], v{vTT+4}, s[{sW2}:{sW2+1}] nt")
    e(f"v_mov_b32 v{vRun}, 0xff800000")
    for i in range(1, 4): e(f"v_mov_b32 v{vRun+i}, 0")
    e(f"s_cmp_eq_u32 s{sHW}, 0")
    e("s_cbranch_scc0 L_h_rounds")
    vS0 = vTT
    lds_wait("L_pollf", 4, 4, vS0 + 12, vS0 + 13, 1)
    stampit(2)
    def sum_pass(p, dst):
        for w in range(4):
            e(f"ds_read_b128 v[{vR+4*w}:{vR+4*w+3}], v6 offset:{LDS_QP+4096*p+1024*w}")
        e("s_waitcnt lgkmcnt(0)")
        for c in range(4):
            e(f"v_add_f32 v{vR+c}, v{vR+c}, v{vR+4+c}")
            e(f"v_add_f32 v{vR+8+c}, v{vR+8+c}, v{vR+12+c}")
            e(f"v_add_f32 v{dst+c}, v{vR+c}, v{vR+8+c}")
            rbf(dst + c, dst + c)
    e(f"v_lshrrev_b32 v{vS0}, 5, v3")
    e(f"v_and_b32 v{vS0+2}, 31, v3")
    e(f"v_lshlrev_b32 v{vS0+2}, 4, v{vS0+2}         ; (l&31)*16")
    e(f"s_cmp_lg_u32 s{sSA}, 0")
    e("s_cbranch_scc1 L_noq")
    sum_pass(0, vU8)
    e(f"v_lshl_add_u32 v{vS0+1}, v{vS0}, 14, v{vS0+2}")
    e(f"s_lshl_b32 s{sT0}, s{sHA}, 9")
    e(f"s_add_u32 s{sT0}, s{sT0}, 0x{WS_Q:x}")
    e(f"v_add_u32 v{vS0+1}, s{sT0}, v{vS0+1}")
    e(f"global_store_dwordx4 v{vS0+1}, v[{vU8}:{vU8+3}], s[{sWS}:{sWS+1}] {SCOPE}")
    e(f"s_lshl_b32 s{sT0}, s{sHA}, 8")
    e(f"s_add_u32 s{sT0}, s{sT0}, 0x{WS_CTR:x}")
    e(f"v_lshlrev_b32 v{vS0+10}, 13, v3")
    e(f"v_add_u32 v{vS0+10}, s{sT0}, v{vS0+10}")
    e("s_mov_b64 exec, 3")
    e(f"global_store_dword v{vS0+10}, v{vZ}, s[{sWS}:{sWS+1}] {SCOPE}")
    e("s_mov_b64 exec, -1")
    g.label("L_noq")
    e(f"s_cmp_eq_u32 s{sFF}, 0")
    e("s_cbranch_scc1 L_nog")
    sum_pass(1, vU8 + 4)
    e(f"v_mul_u32_u24 v{vS0+1}, 7168, v{vS0}")
    e(f"v_add_u32 v{vS0+1}, v{vS0+1}, v{vS0+2}")
    e(f"s_cmp_ge_u32 s{sH}, 14")
    e(f"s_cselect_b32 s{sT0}, 14336, 0")
    e(f"s_lshl_b32 s{sT1}, s{sGC}, 1")
    e(f"s_add_u32 s{sT0}, s{sT0}, s{sT1}")
    e(f"s_add_u32 s{sT0}, s{sT0}, 0x{WS_G:x}")
    e(f"v_add_u32 v{vS0+1}, s{sT0}, v{vS0+1}")
    e(f"global_store_dwordx4 v{vS0+1}, v[{vU8+4}:{vU8+7}], s[{sWS}:{sWS+1}] {SCOPE}")
    g.label("L_nog")
    e("s_waitcnt vmcnt(0)")
    e(f"s_lshl_b32 s{sT0}, s{sH}, 2")
    e(f"v_mov_b32 v{vS0+10}, s{sT0}")
    e(f"v_mov_b32 v{vS0+11}, 1")
    e("s_mov_b64 exec, 1")
    if 'a' not in xp: e(f"global_atomic_add v{vS0+10}, v{vS0+11}, s[{sDBG}:{sDBG+1}] sc1")
    e("s_mov_b64 exec, -1")
    stampit(3)
    lds_wait("L_pprog", 12, 1, vS0 + 12, vS0 + 13, 32)
    stampit(5)
    e(f"v_and_b32 v{vS0+10}, 31, v3")
    e(f"v_lshlrev_b32 v{vS0+10}, 2, v{vS0+10}")
    def b_():
        e(f"global_load_dword v{vS0+11}, v{vS0+10}, s[{sDBG}:{sDBG+1}] {SCOPE}")
        e("s_waitcnt vmcnt(0)")
        e(f"v_cmp_gt_u32 vcc, 8, v{vS0+11}")
    if 'a' not in xp: spin("L_pollall", b_, lambda lab: e(f"s_cbranch_vccz {lab}"), sl_all)
    e(f"v_lshl_add_u32 v{vS0+1}, v{vS0}, 14, v{vS0+2}")
    e(f"s_lshl_b32 s{sT0}, s{sH}, 9")
    e(f"s_add_u32 s{sT0}, s{sT0}, 0x{WS_Q:x}")
    e(f"v_add_u32 v{vS0+1}, s{sT0}, v{vS0+1}")
    e(f"global_load_dwordx4 v[{vS0+4}:{vS0+7}], v{vS0+1}, s[{sWS}:{sWS+1}] {SCOPE}")
    e(f"v_lshlrev_b32 v{vS0+3}, 8, v{vS0}")
    e(f"v_lshrrev_b32 v{vS0+8}, 1, v{vS0+2}")
    e(f"v_add_u32 v{vS0+3}, v{vS0+3}, v{vS0+8}       ; b*256 + (l&31)*8")
    e(f"v_min_u32 v{vS0+10}, 55, v3")
    e(f"v_lshlrev_b32 v{vS0+10}, 2, v{vS0+10}")
    e(f"s_mul_i32 s{sT0}, s{sH}, {56*4}")
    e(f"s_add_u32 s{sT0}, s{sT0}, 0x{WS_G:x}")
    e(f"v_add_u32 v{vS0+10}, s{sT0}, v{vS0+10}")
    gq = vR
    for i, o in enumerate((0, 7168, 14336, 21504)):
        if o: e(f"v_add_u32 v{vS0+11}, {o}, v{vS0+10}")
        e(f"global_load_dword v{gq+i}, v{vS0+11 if o else vS0+10}, s[{sWS}:{sWS+1}] {SCOPE}")
    e("s_waitcnt vmcnt(0)")
    e(f"v_cvt_pk_bf16_f32 v{vS0+8}, v{vS0+4}, v{vS0+5}")
    e(f"v_cvt_pk_bf16_f32 v{vS0+9}, v{vS0+6}, v{vS0+7}")
    e(f"ds_write_b64 v{vS0+3}, v[{vS0+8}:{vS0+9}] offset:{LDS_Q2}")
    for b in range(2):
        e(f"v_mul_f32 v{gq+4+b}, 0x{f32bits(-LOG2E):08x}, v{gq+b}")
    for b in range(2):
        e(f"v_exp_f32 v{gq+4+b}, v{gq+4+b}")
    e("s_nop 0")
    for b in range(2):
        e(f"v_add_f32 v{gq+4+b}, 1.0, v{gq+4+b}")
    for b in range(2):
        e(f"v_rcp_f32 v{gq+4+b}, v{gq+4+b}")
    e("s_nop 0")
    e("v_cmp_gt_u32 vcc, 56, v3")
    for b in range(2):
        e(f"v_mul_f32 v{gq+4+b}, v{gq+b}, v{gq+4+b}")
        rbf(gq + 4 + b, gq + 4 + b)
        e(f"v_mul_f32 v{gq+4+b}, v{gq+4+b}, v{gq+2+b}")
        rbf(gq + 4 + b, gq + 4 + b)
    for b in range(2):
        e(f"v_cndmask_b32 v{gq+4+b}, 0, v{gq+4+b}, vcc")
    e(f"v_lshlrev_b32 v{vS0+2}, 3, v3")
    e(f"ds_write_b64 v{vS0+2}, v[{gq+4}:{gq+5}] offset:{LDS_HF}")
    e(f"v_mov_b32 v{vS0+4}, {LDS_FLAG+8}")
    e(f"v_mov_b32 v{vS0+5}, 1")
    e("s_waitcnt lgkmcnt(0)")
    e(f"ds_write_b32 v{vS0+4}, v{vS0+5}")
    stampit(4)
    g.label("L_h_rounds")
    t = vTT
    lds_wait("L_pg", 8, 1, t + 12, t + 13, 32)
    g.label("L_round")
    e(f"s_lshl_b32 s{sT3}, s{sPH}, 2")
    e(f"s_add_u32 s{sT3}, s{sT3}, 4")
    lds_wait("L_pd", 0, f"s{sT3}", t + 12, t + 13, 2)
    stamp_dyn(6)
    e(f"s_lshl_b32 s{sT0}, s{sHA}, 3")
    e(f"s_add_u32 s{sT0}, s{sT0}, s{sSA}")
    e(f"s_add_u32 s{sT1}, s2, 256")
    e(f"s_cmp_eq_u32 s{sPH}, 0")
    e(f"s_cselect_b32 s{sPA}, s{sT0}, s{sT1}")
    e(f"s_cmp_ge_u32 s{sHW}, 3")
    e("s_cbranch_scc1 L_t3_done")
    e(f"v_and_b32 v{t}, 1, v3")
    e(f"v_mov_b32 v{t+1}, s{sHW}")
    e(f"s_cmp_eq_u32 s{sHW}, 2")
    e("s_cselect_b64 vcc, -1, 0")
    e(f"v_cndmask_b32 v{t}, v{t+1}, v{t}, vcc      ; bsel")
    e(f"s_lshl_b32 s{sT0}, s{sPH}, 5")
    e(f"v_lshlrev_b32 v{t+1}, 3, v{t}")
    e(f"v_add_u32 v{t+1}, s{sT0}, v{t+1}")
    e(f"ds_read_b64 v[{t+2}:{t+3}], v{t+1} offset:{LDS_ML}")
    e(f"ds_read_b64 v[{t+4}:{t+5}], v{t+1} offset:{LDS_ML+16}")
    e(f"s_lshl_b32 s{sT0}, s{sPH}, 11")
    e(f"v_lshlrev_b32 v{t+6}, 9, v{t}")
    e(f"v_lshl_add_u32 v{t+6}, v3, 3, v{t+6}")
    e(f"v_add_u32 v{t+6}, s{sT0}, v{t+6}")
    e(f"ds_read_b64 v[{t+8}:{t+9}], v{t+6} offset:{LDS_PW}")
    e(f"ds_read_b64 v[{t+10}:{t+11}], v{t+6} offset:{LDS_PW+1024}")
    e("s_waitcnt lgkmcnt(0)")
    e(f"v_max_f32 v{t+12}, v{t+2}, v{t+4}")
    e(f"v_sub_f32 v{t+2}, v{t+2}, v{t+12}")
    e(f"v_sub_f32 v{t+4}, v{t+4}, v{t+12}")
    e(f"v_mul_f32 v{t+2}, s{sC2}, v{t+2}")
    e(f"v_mul_f32 v{t+4}, s{sC2}, v{t+4}")
    e(f"v_exp_f32 v{t+2}, v{t+2}")
    e(f"v_exp_f32 v{t+4}, v{t+4}")
    e("s_nop 0")
    e(f"v_mul_f32 v{t+3}, v{t+3}, v{t+2}")
    e(f"v_fmac_f32 v{t+3}, v{t+5}, v{t+4}")
    e(f"v_mul_f32 v{t+8}, v{t+8}, v{t+2}")
    e(f"v_mul_f32 v{t+9}, v{t+9}, v{t+2}")
    e(f"v_fmac_f32 v{t+8}, v{t+10}, v{t+4}")
    e(f"v_fmac_f32 v{t+9}, v{t+11}, v{t+4}")
    e(f"v_mov_b32 v{vG+1}, 0x{TAG:08x}")
    e(f"v_mov_b32 v{vG+3}, 0x{TAG:08x}")
    e(f"s_cmp_eq_u32 s{sHW}, 2")
    e("s_cselect_b64 vcc, -1, 0")
    e(f"v_cndmask_b32 v{vG}, v{t+8}, v{t+12}, vcc")
    e(f"v_cndmask_b32 v{vG+2}, v{t+9}, v{t+3}, vcc")
    e(f"s_lshl_b32 s{sT0}, s{sPA}, 12")
    e(f"s_add_u32 s{sT0}, s{sT0}, 0x{WS_P:x}")
    e(f"s_lshl_b32 s{sT1}, s{sHW}, 10")
    e(f"s_add_u32 s{sT0}, s{sT0}, s{sT1}")
    e(f"v_lshlrev_b32 v{t+1}, 4, v3")
    e(f"v_add_u32 v{t+1}, s{sT0}, v{t+1}")
    e(f"s_cmp_eq_u32 s{sHW}, 2")
    e("s_cselect_b64 exec, 3, -1")
    e(f"global_store_dwordx4 v{t+1}, v[{vG}:{vG+3}], s[{sWS}:{sWS+1}] {SCOPE}")
    e("s_mov_b64 exec, -1")
    g.label("L_t3_done")
    stamp_dyn(8)
    e(f"s_cmp_lg_u32 s{sPH}, 0")
    e("s_cbranch_scc1 L_nonear")
    lds_wait("L_pnear", 16, 1, t + 12, t + 13, 32)
    g.label("L_nonear")
    e(f"s_lshl_b32 s{sT4}, s{sPH}, 8")
    e(f"s_lshl_b32 s{sT1}, s{sH}, 3")
    e(f"s_add_u32 s{sT4}, s{sT4}, s{sT1}")
    e(f"s_lshr_b32 s{sT0}, s{sHW}, 1")
    e(f"s_add_u32 s{sT0}, s{sT0}, s{sT4}")
    e(f"s_lshl_b32 s{sT0}, s{sT0}, 12")
    e(f"s_and_b32 s{sT1}, s{sHW}, 1")
    e(f"s_lshl_b32 s{sT1}, s{sT1}, 10")
    e(f"s_add_u32 s{sT0}, s{sT0}, s{sT1}")
    e(f"s_add_u32 s{sT0}, s{sT0}, 0x{WS_P:x}")
    e(f"v_lshlrev_b32 v{t}, 4, v3")
    e(f"v_add_u32 v{t}, s{sT0}, v{t}")
    for k in range(1, 4): e(f"v_add_u32 v{t+k}, {8192*k}, v{t}")
    e(f"v_lshrrev_b32 v{t+4}, 1, v4")
    e(f"v_lshlrev_b32 v{t+4}, 12, v{t+4}")
    e(f"v_and_b32 v{t+5}, 1, v4")
    e(f"v_lshl_add_u32 v{t+4}, v{t+5}, 4, v{t+4}")
    e(f"s_lshl_b32 s{sT0}, s{sT4}, 12")
    e(f"s_add_u32 s{sT0}, s{sT0}, 0x{WS_P+2048:x}")
    e(f"v_add_u32 v{t+4}, s{sT0}, v{t+4}")
    e(f"s_mov_b32 s{sT2}, 0x{TAG:08x}")
    def b_():
        for k in range(4):
            e(f"global_load_dwordx4 v[{vG+4*k}:{vG+4*k+3}], v{t+k}, s[{sWS}:{sWS+1}] {SCOPE}")
        e(f"global_load_dwordx4 v[{vG+16}:{vG+19}], v{t+4}, s[{sWS}:{sWS+1}] {SCOPE}")
        e("s_waitcnt vmcnt(0)")
        e(f"v_xor_b32 v{t+6}, s{sT2}, v{vG+1}")
        for r in [vG + 3] + [vG + 4 * k + o for k in range(1, 5) for o in (1, 3)]:
            e(f"v_xor_b32 v{t+7}, s{sT2}, v{r}")
            e(f"v_or_b32 v{t+6}, v{t+6}, v{t+7}")
        e(f"v_cmp_ne_u32 vcc, 0, v{t+6}")
    spin("L_pollP", b_, lambda lab: e(f"s_cbranch_vccz {lab}"), sl_p1)
    stamp_dyn(10)
    m, l = vG + 16, vG + 18
    Mr, Lr, o0, o1 = vRun, vRun + 1, vRun + 2, vRun + 3
    e(f"v_max_f32 v{t+6}, v{m}, v{Mr}")
    for ctrl in ["row_ror:2", "row_ror:4", "row_ror:8"]:
        e("s_nop 1")
        e(f"v_max_f32_dpp v{t+6}, v{t+6}, v{t+6} {ctrl} row_mask:0xf bank_mask:0xf")
    e(f"v_sub_f32 v{t+7}, v{m}, v{t+6}")
    e(f"v_sub_f32 v{t+9}, v{Mr}, v{t+6}")
    e(f"v_mul_f32 v{t+7}, s{sC2}, v{t+7}")
    e(f"v_mul_f32 v{t+9}, s{sC2}, v{t+9}")
    e(f"v_exp_f32 v{t+7}, v{t+7}               ; w")
    e(f"v_exp_f32 v{t+9}, v{t+9}               ; alpha")
    e("s_nop 0")
    e(f"v_mul_f32 v{t+8}, v{t+7}, v{l}")
    for ctrl in ["row_ror:2", "row_ror:4", "row_ror:8"]:
        e("s_nop 1")
        e(f"v_add_f32_dpp v{t+8}, v{t+8}, v{t+8} {ctrl} row_mask:0xf bank_mask:0xf")
    e(f"v_fma_f32 v{Lr}, v{Lr}, v{t+9}, v{t+8}")
    e(f"v_mov_b32 v{Mr}, v{t+6}")
    e(f"s_and_b32 s{sT0}, s{sHW}, 1")
    e("s_nop 0")
    e(f"v_readlane_b32 s{sT1}, v{t+9}, s{sT0}")
    e("s_nop 1")
    e(f"v_mul_f32 v{o0}, s{sT1}, v{o0}")
    e(f"v_mul_f32 v{o1}, s{sT1}, v{o1}")
    for k in range(4):
        e(f"s_add_u32 s{sT0}, s{sHW}, {4*k}")
        e("s_nop 0")
        e(f"v_readlane_b32 s{sT1}, v{t+7}, s{sT0}")
        e("s_nop 1")
        e(f"v_fmac_f32 v{o0}, s{sT1}, v{vG+4*k}")
        e(f"v_fmac_f32 v{o1}, s{sT1}, v{vG+4*k+2}")
    e(f"s_cmp_eq_u32 s{sPH}, 0")
    e(f"s_mov_b32 s{sPH}, 1")
    e("s_cbranch_scc1 L_round")
    e(f"v_rcp_f32 v{t+9}, v{Lr}")
    e(f"s_and_b32 s{sT0}, s{sHW}, 1")
    e("s_nop 0")
    e(f"v_fma_f32 v{t+10}, -v{Lr}, v{t+9}, 1.0")
    e(f"v_fma_f32 v{t+9}, v{t+10}, v{t+9}, v{t+9}")
    e("s_nop 0")
    e(f"v_readlane_b32 s{sT1}, v{t+9}, s{sT0}")
    e("s_nop 1")
    e(f"v_mul_f32 v{t+12}, s{sT1}, v{o0}")
    e(f"v_mul_f32 v{t+13}, s{sT1}, v{o1}")
    e(f"s_lshl_b32 s{sT0}, s{sHW}, 2")
    e(f"v_lshlrev_b32 v{t}, 5, v3")
    e(f"v_add_u32 v{t}, s{sT0}, v{t}")
    e(f"ds_write_b32 v{t}, v{t+12} offset:{LDS_O2}")
    e(f"ds_write_b32 v{t}, v{t+13} offset:{LDS_O2+16}")
    e("s_waitcnt lgkmcnt(0)")
    e("s_barrier")
    def gemv_part(acc, data_regs_list, xn_list):
        for n, (dr, xr) in enumerate(zip(data_regs_list, xn_list)):
            for d in range(4):
                e(f"v_lshlrev_b32 v{vU8+2*d}, 16, v{dr+d}")
                e(f"v_and_b32 v{vU8+2*d+1}, s{sMASK}, v{dr+d}")
            for b in range(2):
                for c in range(8):
                    if n == 0: e(f"v_mul_f32 v{acc+8*b+c}, v{vU8+c}, v{xr+b}")
                    else: e(f"v_fmac_f32 v{acc+8*b+c}, v{vU8+c}, v{xr+b}")
    def reduce16_stage12(acc):
        e("s_nop 1")
        for v in range(8): e(f"v_permlane32_swap_b32 v{acc+v}, v{acc+v+8}")
        e("s_nop 1")
        for v in range(8): e(f"v_add_f32 v{acc+v}, v{acc+v}, v{acc+v+8}")
        e("s_nop 1")
        for v in range(4): e(f"v_permlane16_swap_b32 v{acc+v}, v{acc+v+4}")
        e("s_nop 1")
        for v in range(4): e(f"v_add_f32 v{acc+v}, v{acc+v}, v{acc+v+4}")
    e(f"v_lshrrev_b32 v{t}, 3, v{vTid}")
    e(f"v_lshlrev_b32 v{t+1}, 4, v{t}")
    ov = vG
    for k in range(4):
        e(f"ds_read_b128 v[{ov+4*k}:{ov+4*k+3}], v{t+1} offset:{LDS_O2+512*k}")
    e(f"v_lshlrev_b32 v{t+2}, 3, v{t}")
    e(f"ds_read_b64 v[{t+4}:{t+5}], v{t+2} offset:{LDS_HF}")
    e(f"ds_read_b64 v[{t+6}:{t+7}], v{t+2} offset:{LDS_HF+256}")
    e("s_waitcnt vmcnt(0) lgkmcnt(0)")
    for k in range(4):
        e(f"v_add_f32 v{ov+4*k}, v{ov+4*k}, v{ov+4*k+2}")
        e(f"v_add_f32 v{ov+4*k+1}, v{ov+4*k+1}, v{ov+4*k+3}")
        if mimic:
            rbf(ov + 4 * k, ov + 4 * k); rbf(ov + 4 * k + 1, ov + 4 * k + 1)
    vR2 = vY
    gemv_part(vR2, [vWT + 4 * k for k in range(6)], [ov + 4 * k for k in range(4)] + [t + 4, t + 6])
    reduce16_stage12(vR2)
    e("s_nop 1")
    for v in range(4): e(f"v_add_f32_dpp v{vR2+v}, v{vR2+v}, v{vR2+v} row_ror:8 row_mask:0xf bank_mask:0xf")
    e(f"v_lshrrev_b32 v{t}, 1, v5")
    e(f"v_lshlrev_b32 v{t}, 8, v{t}")
    e(f"v_and_b32 v{t+1}, 1, v5")
    e(f"v_lshl_add_u32 v{t}, v{t+1}, 4, v{t}")
    e(f"v_and_b32 v{t+1}, 7, v4")
    e(f"v_lshl_add_u32 v{t}, v{t+1}, 5, v{t}")
    e(f"s_lshl_b32 s{sT0}, s{sHW}, 9")
    e(f"v_add_u32 v{t}, s{sT0}, v{t}")
    e("v_cmp_gt_u32 vcc, 8, v4")
    e(f"s_and_saveexec_b64 s[{sEX}:{sEX+1}], vcc")
    e(f"ds_write_b128 v{t}, v[{vR2}:{vR2+3}] offset:{LDS_YP}")
    e(f"s_mov_b64 exec, s[{sEX}:{sEX+1}]")
    e("s_waitcnt lgkmcnt(0)")
    e("s_barrier                              ; #5")
    e(f"s_cmp_lg_u32 s{sHW}, 0")
    e("s_cbranch_scc1 L_end_h")
    stampit(12)
    e(f"v_lshrrev_b32 v{t}, 1, v3")
    e(f"v_and_b32 v{t+1}, 1, v3")
    e(f"v_lshlrev_b32 v{t+2}, 8, v{t+1}")
    e(f"v_lshl_add_u32 v{t+2}, v{t}, 3, v{t+2}")
    for w in range(4):
        e(f"ds_read_b64 v[{t+4+2*w}:{t+5+2*w}], v{t+2} offset:{LDS_YP+512*w}")
    e("s_waitcnt lgkmcnt(0)")
    e(f"v_add_f32 v{t+4}, v{t+4}, v{t+6}")
    e(f"v_add_f32 v{t+5}, v{t+5}, v{t+7}")
    e(f"v_add_f32 v{t+8}, v{t+8}, v{t+10}")
    e(f"v_add_f32 v{t+9}, v{t+9}, v{t+11}")
    e(f"v_add_f32 v{vG}, v{t+4}, v{t+8}")
    e(f"v_add_f32 v{vG+2}, v{t+5}, v{t+9}")
    e(f"v_mov_b32 v{vG+1}, 0x{TAG:08x}")
    e(f"v_mov_b32 v{vG+3}, 0x{TAG:08x}")
    e(f"s_lshl_b32 s{sT0}, s{sS8}, 15")
    e(f"s_lshl_b32 s{sT1}, s{sH}, 5")
    e(f"s_add_u32 s{sT0}, s{sT0}, s{sT1}")
    e(f"s_add_u32 s{sT0}, s{sT0}, 0x{WS_Y:x}")
    e(f"v_lshlrev_b32 v{t+2}, 10, v{t}")
    e(f"v_lshl_add_u32 v{t+2}, v{t+1}, 4, v{t+2}")
    e(f"v_add_u32 v{t+2}, s{sT0}, v{t+2}")
    e(f"global_store_dwordx4 v{t+2}, v[{vG}:{vG+3}], s[{sWS}:{sWS+1}] {SCOPE}")
    e(f"s_lshl_b32 s{sT0}, s{sS8}, 5")
    e(f"s_add_u32 s{sT0}, s{sT0}, s{sH}")
    e(f"s_lshl_b32 s{sT0}, s{sT0}, 10")
    e(f"s_add_u32 s{sT0}, s{sT0}, 0x{WS_Y:x}")
    e(f"v_lshlrev_b32 v{t+3}, 4, v3")
    e(f"v_add_u32 v{t+3}, s{sT0}, v{t+3}")
    e(f"s_lshl_b32 s{sT0}, s{sS8}, 7")
    e(f"s_lshl_b32 s{sT1}, s{sH}, 2")
    e(f"s_add_u32 s{sT0}, s{sT0}, s{sT1}")
    e(f"v_lshlrev_b32 v{t+4}, 10, v{t+1}")
    e(f"v_add_u32 v{t+4}, s{sT0}, v{t+4}")
    e(f"global_load_dword v{t+5}, v{t+4}, s[{sX}:{sX+1}]")
    e(f"s_mov_b32 s{sT2}, 0x{TAG:08x}")
    def b_():
        e(f"global_load_dwordx4 v[{vG+4}:{vG+7}], v{t+3}, s[{sWS}:{sWS+1}] {SCOPE}")
        e("s_waitcnt vmcnt(0)")
        e(f"v_xor_b32 v{t+6}, s{sT2}, v{vG+5}")
        e(f"v_xor_b32 v{t+7}, s{sT2}, v{vG+7}")
        e(f"v_or_b32 v{t+6}, v{t+6}, v{t+7}")
        e(f"v_cmp_ne_u32 vcc, 0, v{t+6}")
    spin("L_pollY", b_, lambda lab: e(f"s_cbranch_vccz {lab}"), 1)
    y0, y1 = vG + 4, vG + 6
    for ctrl in ["row_ror:2", "row_ror:4", "row_ror:8"]:
        e("s_nop 1")
        e(f"v_add_f32_dpp v{y0}, v{y0}, v{y0} {ctrl} row_mask:0xf bank_mask:0xf")
        e(f"v_add_f32_dpp v{y1}, v{y1}, v{y1} {ctrl} row_mask:0xf bank_mask:0xf")
    for sw in ["v_permlane16_swap_b32", "v_permlane32_swap_b32"]:
        e(f"v_mov_b32 v{t+6}, v{y0}")
        e(f"v_mov_b32 v{t+7}, v{y1}")
        e("s_nop 1")
        e(f"{sw} v{y0}, v{t+6}")
        e(f"{sw} v{y1}, v{t+7}")
        e("s_nop 1")
        e(f"v_add_f32 v{y0}, v{y0}, v{t+6}")
        e(f"v_add_f32 v{y1}, v{y1}, v{t+7}")
    e(f"v_lshlrev_b32 v{t+6}, 16, v{t+5}")
    e(f"v_and_b32 v{t+7}, s{sMASK}, v{t+5}")
    e(f"v_add_f32 v{y0}, v{y0}, v{t+6}")
    e(f"v_add_f32 v{y1}, v{y1}, v{t+7}")
    e(f"v_cvt_pk_bf16_f32 v{t+8}, v{y0}, v{y1}")
    e("s_mov_b64 exec, 3")
    e(f"global_store_dword v{t+4}, v{t+8}, s[{sOUT}:{sOUT+1}]")
    e("s_mov_b64 exec, -1")
    stampit(13)
    g.label("L_end_h")
    stamp_flush()
    g.label("L_done")
    nv = max(nv_stream, vWT + 24)
    nvr = (nv + 7) // 8 * 8
    hdr = f"""; Kernarg layout (96 bytes, ptrs only, base s[0:1]):
; @launch grid=(256,1,1) block=(512,1,1) lds={LDS_SIZE}
.amdgcn_target "amdgcn-amd-amdhsa--gfx950"
.text
.globl {KN}_kernel
.p2align 8
.type {KN}_kernel,@function
{KN}_kernel:
"""
    ftr = f"""
s_endpgm
.section .rodata,"a"
.p2align 6
.amdhsa_kernel {KN}_kernel
  .amdhsa_next_free_vgpr {nvr}
  .amdhsa_next_free_sgpr {NSG}
  .amdhsa_accum_offset {nvr}
  .amdhsa_group_segment_fixed_size 0
  .amdhsa_kernarg_size 96
  .amdhsa_user_sgpr_count 2
  .amdhsa_user_sgpr_kernarg_segment_ptr 1
  .amdhsa_system_sgpr_workgroup_id_x 1
.end_amdhsa_kernel
"""
    return hdr + "\n".join(g.L) + ftr

if __name__ == "__main__":
    ap = argparse.ArgumentParser()
    ap.add_argument("out")
    ap.add_argument("--u", type=int, default=8)
    ap.add_argument("--s1", type=int, default=16)
    ap.add_argument("--stamp", action="store_true")
    ap.add_argument("--nomimic", action="store_true")
    ap.add_argument("--noprio", action="store_true")
    ap.add_argument("--prog", type=int, default=5)
    ap.add_argument("--nearx", type=int, default=64)
    ap.add_argument("--earlyk", type=int, default=0)
    ap.add_argument("--delayk", type=int, default=None)
    ap.add_argument("--x", default="")
    a = ap.parse_args()
    open(a.out, "w").write(gen(a.u, a.s1, a.stamp, not a.nomimic, prio=not a.noprio, prog=a.prog, nearx=a.nearx, early_k=a.earlyk, delay_k=a.delayk, xp=a.x))
```
